```python
import torch

def _softmax(x, axis=-1):
    return torch.softmax(x, dim=axis)
def _gelu(x):
    return torch.nn.functional.gelu(x, approximate="tanh")
def _silu(x):
    return torch.nn.functional.silu(x)
def _sigmoid(x):
    return torch.sigmoid(x)
def _layernorm(x, axis=-1, eps=1e-5):
    m = x.mean(dim=axis, keepdim=True)
    v = x.var(dim=axis, keepdim=True, unbiased=False)
    return (x - m) / torch.sqrt(v + eps)
def _scatter_add(tgt, idx, src, axis=0):
    return tgt.clone().index_add_(axis, idx, src)
def _segment_sum(src, seg, n):
    out = torch.zeros((n,) + src.shape[1:], dtype=src.dtype)
    return out.index_add_(0, seg, src)
def _pad(x, pw):
    flat = tuple(v for pair in reversed(pw) for v in pair)
    return torch.nn.functional.pad(x, flat)

kernel_name = 'parallel_sum__ssm_conv_s4d__glu_gated_glu__prompt'

def setup_inputs():

    _w = (lambda a: (lambda t: t.to(torch.bfloat16) if t.is_floating_point() else t)(torch.as_tensor(a)))
    def _A_setup():
        Bsz, L, D, N = 1, 2048, 640, 192
        return {
            "u": _w((lambda *s: torch.randn(*s, dtype=torch.bfloat16) * 0.05)(Bsz, L, D)),
            "log_A_real": _w((lambda *s: torch.randn(*s, dtype=torch.bfloat16) * 3.2)(D, N) * 0.5),
            "A_imag": _w((lambda *s: torch.randn(*s, dtype=torch.bfloat16) * 0.1)(D, N) * 3.14),
            "C_real": _w((lambda *s: torch.randn(*s, dtype=torch.bfloat16) * 1.6)(D, N) / N ** 0.5),
            "C_imag": _w((lambda *s: torch.randn(*s, dtype=torch.bfloat16) * 1.6)(D, N) / N ** 0.5),
            "log_dt": _w((lambda *s: torch.randn(*s, dtype=torch.bfloat16) * 0.1)(D) * 0.5 - 4.0),
            "D_skip": _w((lambda *s: torch.randn(*s, dtype=torch.bfloat16) * 0.2)(D)),
        }
    _A_in = _A_setup()

    def _B_setup():
        B, S, D, F = 1, 2048, 640, 1536
        return {
            "x": _w((lambda *s: torch.randn(*s, dtype=torch.bfloat16) * 0.05)(B, S, D)),
            "w_gate": _w((lambda *s: torch.randn(*s, dtype=torch.bfloat16) * 0.05)(D, F)),
            "w_up": _w((lambda *s: torch.randn(*s, dtype=torch.bfloat16) * 0.05)(D, F)),
            "w_down": _w((lambda *s: torch.randn(*s, dtype=torch.bfloat16) * 0.05)(F, D)),
        }
    _B_in = _B_setup()

    return {
        "A_u": _A_in["u"],
        "A_log_A_real": _A_in["log_A_real"],
        "A_A_imag": _A_in["A_imag"],
        "A_C_real": _A_in["C_real"],
        "A_C_imag": _A_in["C_imag"],
        "A_log_dt": _A_in["log_dt"],
        "A_D_skip": _A_in["D_skip"],
        "B_x": _B_in["x"],
        "B_w_gate": _B_in["w_gate"],
        "B_w_up": _B_in["w_up"],
        "B_w_down": _B_in["w_down"],
    }

def reference(A_u, A_log_A_real, A_A_imag, A_C_real, A_C_imag, A_log_dt, A_D_skip, B_x, B_w_gate, B_w_up, B_w_down):
    def _A_ref(u, log_A_real, A_imag, C_real, C_imag, log_dt, D_skip):
        L = u.shape[1]
        dt = torch.exp(log_dt)
        A = -torch.exp(log_A_real) + 1j * A_imag
        C = (C_real + 1j * C_imag) * dt[:, None]
        pos = (lambda x, dt: x.to(dt))(torch.arange(L), log_dt.dtype)
        P = torch.exp((A * dt[:, None])[:, :, None] * pos[None, None, :])
        K = 2.0 * torch.einsum("dn,dnl->dl", C, P).real
        L2 = 2 * L
        u_t = (lambda x, *d: x.permute(*d))(u, 0, 2, 1)
        Kf = (lambda x, *a, **k: torch.fft.rfft(x.float(), *a, **k))(K, L2)
        Uf = (lambda x, *a, **k: torch.fft.rfft(x.float(), *a, **k))(u_t, L2)
        y = (lambda x, *a, **k: torch.fft.irfft(x, *a, **k).to(torch.bfloat16))(Uf * Kf[None, :, :], L2)[:, :, :L]
        y = (lambda x, *d: x.permute(*d))(y, 0, 2, 1)
        return y + u * D_skip[None, None, :]

    def _B_ref(x, w_gate, w_up, w_down):
        g = torch.einsum("bsd,df->bsf", x, w_gate)
        u = torch.einsum("bsd,df->bsf", x, w_up)
        h = _sigmoid(g) * u
        return torch.einsum("bsf,fd->bsd", h, w_down)

    x = A_u
    xn = _layernorm(x, axis=-1)
    return x + _A_ref(xn, A_log_A_real, A_A_imag, A_C_real, A_C_imag, A_log_dt, A_D_skip) + _B_ref(xn, B_w_gate, B_w_up, B_w_down)
```

```python
class A:
    def __init__(self):
        self.l = []
        self._n = 0
    def __call__(self, s):
        for ln in s.strip("\n").split("\n"):
            ln = ln.strip()
            if ln: self.l.append(ln)
        return self
    def label(self, name):
        self.l.append(name + ":")
    def text(self):
        return "\n".join(("" if x.endswith(":") else "    ") + x for x in self.l)

def kern(name, body, vgpr=64, sgpr=96, accum=None, extra=""):
    if accum is None: accum = (vgpr + 3) // 4 * 4
    return f""".text
.globl {name}
.p2align 8
.type {name},@function
{name}:
{body}
    s_endpgm
.section .rodata,"a"
.p2align 6
.amdhsa_kernel {name}
  .amdhsa_next_free_vgpr {vgpr}
  .amdhsa_next_free_sgpr {sgpr}
  .amdhsa_accum_offset {accum}
  .amdhsa_group_segment_fixed_size 0
  .amdhsa_kernarg_size 112
  .amdhsa_user_sgpr_count 2
  .amdhsa_user_sgpr_kernarg_segment_ptr 1
  .amdhsa_system_sgpr_workgroup_id_x 1
{extra}.end_amdhsa_kernel
"""

def vr(b, n):
    return f"v[{b}:{b+n-1}]" if n > 1 else f"v{b}"
def sr(b, n):
    return f"s[{b}:{b+n-1}]" if n > 1 else f"s{b}"

def interleave(main, fill, per):
    out = []; k = 0
    for i, m in enumerate(main):
        out.append(m)
        n = per[i] if isinstance(per, (list, tuple)) else per
        for _ in range(n):
            if k < len(fill):
                out.append(fill[k]); k += 1
    out += fill[k:]
    return out

KA = dict(x=0, lar=8, aim=16, cr=24, ci=32, ldt=40, dsk=48, bx=56, wg=64, wu=72, wd=80, out=88, dbg=96, ws=104)
WS_STATS = 0x000000
WS_CS    = 0x010000
WS_FLAG  = 0x080000
WS_UT    = 0x100000
WS_K     = 0x400000
WS_WD    = 0xA00000
WS_H     = 0xC00000
WS_AO    = 0x1400000
WS_SIZE  = 0x10000000
```

```python
import re
TRANS = ("v_exp_f32", "v_log_f32", "v_rcp_f32", "v_rsq_f32", "v_sqrt_f32", "v_sin_f32", "v_cos_f32")
def regs(tok):
    tok = tok.strip()
    tok = re.sub(r"^-|^abs\(|\)$|^\|", "", tok).rstrip("|").rstrip(")")
    m = re.fullmatch(r"([vsa])\[(\d+):(\d+)\]", tok)
    if m: return [(m.group(1), i) for i in range(int(m.group(2)), int(m.group(3)) + 1)]
    m = re.fullmatch(r"([vsa])(\d+)", tok)
    if m: return [(m.group(1), int(m.group(2)))]
    if tok == "vcc": return [("s", 106), ("s", 107)]
    if tok == "m0": return [("s", 124)]
    if tok == "exec": return [("s", 126), ("s", 127)]
    return []
def parse(ins):
    ins = ins.split(";")[0].strip()
    p = ins.split(None, 1)
    op = p[0]
    rest = p[1] if len(p) > 1 else ""
    ops = []; cur = ""; d = 0
    for ch in rest:
        if ch == "[": d += 1
        if ch == "]": d -= 1
        if ch == "," and d == 0: ops.append(cur); cur = ""
        else: cur += ch
    if cur.strip(): ops.append(cur)
    toks = []
    for o in ops:
        toks.append(o.strip().split()[0] if o.strip() else "")
    return op, toks, ins
def classify(ins):
    op, t, full = parse(ins)
    W = []; R = []; c = "other"
    if op.startswith("v_mfma"):
        c = "mfma"; W = regs(t[0]); R = regs(t[1]) + regs(t[2]) + regs(t[3])
    elif op.startswith("v_cmp"):
        c = "valu"; W = regs(t[0]); R = sum((regs(x) for x in t[1:]), [])
    elif op.startswith(("v_readfirstlane", "v_readlane")):
        c = "valu"; W = regs(t[0]); R = sum((regs(x) for x in t[1:]), [])
    elif op.startswith("v_permlane"):
        c = "valu"; W = regs(t[0]) + regs(t[1]); R = W
    elif op.startswith("v_"):
        c = "valu"; W = regs(t[0]); R = sum((regs(x) for x in t[1:]), [])
        if op.startswith(("v_fmac", "v_dot2c", "v_writelane")): R += W
        if op.startswith(("v_add_co", "v_sub_co", "v_addc_co", "v_subb_co")): W += regs(t[1])
        if op.startswith("v_cndmask") and len(t) == 3: R += regs("vcc")
    elif op.startswith("ds_"):
        c = "ds"
        if op.startswith(("ds_read", "ds_bpermute", "ds_permute", "ds_swizzle")) or "_rtn" in op:
            W = regs(t[0]); R = sum((regs(x) for x in t[1:]), [])
        else:
            R = sum((regs(x) for x in t), [])
    elif op.startswith(("buffer_", "global_")):
        c = "vmem"
        if "load" in op and " lds" not in full:
            W = regs(t[0]); R = sum((regs(x) for x in t[1:]), [])
        else:
            R = sum((regs(x) for x in t), [])
            if " lds" in full: R += regs("m0")
    elif op.startswith("s_"):
        c = "salu"
        if op.startswith(("s_cmp", "s_cbranch", "s_branch", "s_waitcnt", "s_barrier", "s_nop", "s_setprio", "s_sleep", "s_endpgm", "s_bitcmp")):
            R = sum((regs(x) for x in t), [])
        else:
            W = regs(t[0]) if t else []; R = sum((regs(x) for x in t[1:]), [])
            if "saveexec" in op: W += regs("exec")
    return op, c, W, R, full
def states(ins):
    op, t, _ = parse(ins)
    if op == "s_nop": return int(t[0], 0) + 1
    return 1
def passes(op):
    if "32x32x16" in op or "32x32x8" in op: return 8
    if "16x16x32" in op or "16x16x16" in op: return 4
    if "4x4x4" in op: return 2
    raise ValueError(op)
def fix(lines):
    out = []
    hist = []
    pos = 0
    nins = 0
    for ln in lines:
        if ln.endswith(":") or ln.startswith((".", ";")):
            out.append(ln); continue
        op, c, W, R, full = classify(ln)
        need = 0
        isdpp = "_dpp" in op or "quad_perm" in full or "row_" in full
        for (p, op0, c0, W0, R0, full0) in hist[-24:]:
            dist = pos - p - 1
            req = 0
            Wv = set(x for x in W0 if x[0] in "va"); Ws = set(x for x in W0 if x[0] == "s")
            Rset = set(R); Wset = set(W)
            if c0 == "valu":
                if op0.startswith(TRANS) and c in ("valu", "mfma") and (Wv & Rset): req = max(req, 1)
                if c == "valu" and (isdpp or op.startswith("v_permlane")) and (Wv & Rset): req = max(req, 2)
                if c == "mfma" and (Wv & Rset): req = max(req, 2)
                if op.startswith(("v_readlane", "v_readfirstlane")) and (Wv & Rset): req = max(req, 1)
                if Ws & Rset:
                    if c == "valu": req = max(req, 4 if op.startswith(("v_readlane", "v_writelane")) else 2)
                    if c == "vmem": req = max(req, 5)
                    if c == "salu": req = max(req, 1)
                if ("sdwa" in op0 or "op_sel" in full0 and not op0.startswith("v_pk")) and c == "valu" and (Wv & (Rset | Wset)): req = max(req, 1)
            if c0 == "mfma":
                n = passes(op0); d = {2: 5, 4: 8, 8: 12}[n]
                if c == "mfma":
                    _, t, _ = parse(ln)
                    ab = set(regs(t[1]) + regs(t[2])); cc = set(regs(t[3]))
                    if Wv & ab: req = max(req, d)
                    if Wv & cc and not (cc == Wv and passes(op) == n and n >= 4): req = max(req, {2: 4, 4: 6, 8: 10}[n])
                elif c in ("valu", "ds", "vmem") and (Wv & (Rset | Wset)): req = max(req, d)
                _, t0, _ = parse(full0)
                c0set = set(regs(t0[3]))
                if c == "valu" and (c0set & Wset): req = max(req, {2: 1, 4: 3, 8: 7}[n])
            if c0 == "salu" and ("s", 124) in W0 and c == "vmem" and " lds" in full: req = max(req, 1)
            if c0 == "vmem" and "store" in op0 and ("x4" in op0 or "x3" in op0):
                _, t0, _ = parse(full0)
                data = set(regs(t0[0])) if op0.startswith("buffer") else set(regs(t0[1]))
                if data & Wset: req = max(req, 2)
            if req > dist: need = max(need, req - dist)
        while need > 0:
            k = min(need, 16)
            out.append(f"s_nop {k-1}"); pos += k; need -= k; nins += 1
        out.append(ln)
        hist.append((pos, op, c, W, R, full))
        pos += states(ln)
    return out, nins
```

```python
from asmlib import *
import hazard

NSW, NSX = 5, 3
WSL, XSL = 12288, 16384
XB = NSW * WSL
KT = XB + NSX * XSL
KROW = 272
KTS = 57 * KROW
EXT = 157184
STATS = EXT + 3072
STATS2 = STATS + 1024
DUMMY = STATS2 + 1024
LDS1 = DUMMY + 512
assert KT + 3 * KTS <= EXT and LDS1 <= 163840
NBAR = 21

LOG2E = 0x3fb8aa3b; LOG2E_LO = 0x32a57060; LN2 = 0x3f317218

def srd(a, r, lo, hi, nbytes):
    a(f"""
    s_mov_b32 s{r}, s{lo}
    s_mov_b32 s{r+1}, s{hi}
    s_mov_b32 s{r+2}, {nbytes}
    s_mov_b32 s{r+3}, 0x20000
    """)

TRACE = [False]
def bar(a, t):
    if TRACE[0]:
        a("s_memtime s[96:97]")
        a("s_barrier")
        a("s_memtime s[98:99]")
        a("s_waitcnt lgkmcnt(0)")
        a(f"v_writelane_b32 v167, s96, {t}")
        a(f"v_writelane_b32 v167, s98, {32+t}")
    else:
        a("s_barrier")
def trace_end(a):
    if not TRACE[0]: return
    a(f"""
    s_memtime s[96:97]
    s_waitcnt lgkmcnt(0)
    v_writelane_b32 v167, s96, 31
    v_writelane_b32 v167, s94, 30
    s_mov_b32 s88, s58
    s_mov_b32 s89, s59
    s_mov_b32 s90, {WS_SIZE}
    s_mov_b32 s91, 0x20000
    s_mul_i32 s92, s2, 12
    s_add_u32 s92, s92, s95
    s_lshl_b32 s92, s92, 8
    s_add_u32 s92, s92, 0x9000000
    v_lshlrev_b32 v166, 2, v0
    buffer_store_dword v167, v166, s[88:91], s92 offen
    """)

def atomic(bg, text):
    t = A(); t(text); bg.l.append(list(t.l))

def sliced(a, bg, per, pre=None, post=None, nbar=NBAR, first=0):
    k = 0
    def put(x):
        if isinstance(x, list):
            for y in x: a(y)
            return len(x)
        a(x); return 1
    for t in range(first, nbar):
        bar(a, t)
        if pre: pre(t)
        n = per(t) if callable(per) else per
        cnt = 0
        while k < len(bg) and cnt < n:
            x = bg[k]
            if isinstance(x, tuple):
                if x[0] == "break":
                    k += 1; break
                if x[1] > t: break
                k += 1; continue
            cnt += put(x); k += 1
        if post: post(t)
    for x in bg[k:]:
        assert not isinstance(x, tuple), "marker left after last barrier"
        put(x)

def trlane(a, dst, tmp, rowstride):
    a(f"""
    v_lshrrev_b32 v{tmp}, 5, v0
    v_bfe_u32 v{tmp+1}, v0, 2, 2
    v_lshl_add_u32 v{tmp}, v{tmp}, 3, v{tmp+1}
    v_mul_u32_u24 v{tmp}, {rowstride}, v{tmp}
    v_bfe_u32 v{tmp+1}, v0, 4, 1
    v_lshl_add_u32 v{tmp}, v{tmp+1}, 5, v{tmp}
    v_and_b32 v{tmp+1}, 3, v0
    v_lshl_add_u32 v{dst}, v{tmp+1}, 3, v{tmp}
    """)

def gen(P=30, quota=10, pat=(4, 3, 3, 3, 0, 0), do_kgen=True, do_xnt=True, do_repack=True, stamps=False,
        st_flag=6, st_poll=9, st_chk=11, kper=66, trace=False, csprio=True, fmode='byte'):
    a = A()
    TRACE[0] = trace
    if trace: a("s_memtime s[94:95]\ns_waitcnt lgkmcnt(0)")
    a(f"""
    s_cmp_ge_u32 s2, 256
    s_cbranch_scc1 L1end
    s_load_dwordx16 s[32:47], s[0:1], 0
    s_load_dwordx8 s[48:55], s[0:1], 64
    s_load_dwordx4 s[56:59], s[0:1], 96
    v_lshrrev_b32 v1, 6, v0
    v_and_b32 v0, 63, v0
    v_readfirstlane_b32 s3, v1
    s_and_b32 s60, s2, 1
    s_bfe_u32 s61, s2, 0x20001
    s_bfe_u32 s62, s2, 0x30003
    s_lshr_b32 s63, s2, 6
    s_lshl_b32 s4, s60, 3
    s_add_u32 s4, s4, s62
    s_lshl_b32 s5, s61, 2
    s_add_u32 s5, s5, s63
    s_mul_i32 s6, s61, 3
    s_min_u32 s6, s6, 8
    s_mov_b32 s95, s3
    s_cmp_ge_u32 s3, 2
    s_cbranch_scc1 L1notload
    """)
    a("s_setprio 3")
    a("""
    v_lshrrev_b32 v20, 3, v0
    v_and_b32 v21, 7, v0
    v_lshrrev_b32 v22, 4, v0
    v_xor_b32 v21, v21, v22
    v_mul_u32_u24 v20, 1280, v20
    v_lshl_add_u32 v4, v21, 4, v20
    v_xor_b32 v21, 4, v21
    v_lshl_add_u32 v5, v21, 4, v20
    v_add_u32 v5, 9216, v5
    v_add_u32 v6, 18432, v4
    v_add_u32 v7, 18432, v5
    """)
    for t3 in range(3):
        a(f"""
        v_add_u32 v20, {64*t3}, v0
        v_mul_u32_u24 v21, 43691, v20
        v_lshrrev_b32 v21, 19, v21
        v_mul_u32_u24 v22, 12, v21
        v_sub_u32 v22, v20, v22
        v_mul_u32_u24 v21, 3072, v21
        v_lshl_add_u32 v{1+t3}, v22, 4, v21
        """)
        if t3: a(f"v_subrev_u32 v{1+t3}, {1024*t3}, v{1+t3}")
    a(f"""
    s_mul_i32 s64, s4, {128*1280}
    s_mul_i32 s30, s5, 192
    s_mul_i32 s31, s3, {64*1280}
    s_mul_i32 s65, s3, 6144
    s_lshl_b32 s66, s3, 13
    s_add_u32 s66, s66, {XB}
    s_lshl_b32 s26, s6, 1
    s_mov_b32 s27, s6
    s_cmp_eq_u32 s3, 1
    s_waitcnt lgkmcnt(0)
    s_cselect_b32 s12, s50, s48
    s_cselect_b32 s13, s51, s49
    s_mov_b32 s14, {640*3072}
    s_mov_b32 s15, 0x20000
    s_add_u32 s8, s32, s64
    s_addc_u32 s9, s33, 0
    s_mov_b32 s10, {128*1280}
    s_mov_b32 s11, 0x20000
    """)
    items = []
    for T in range(10):
        items += [("X", T, n) for n in range(8)]
        items += [("W", 2*T, n) for n in range(6)] + [("W", 2*T+1, n) for n in range(6)]
    if do_repack:
        items += [("R", 20, n) for n in range(5)]
    q = []
    def issue(it):
        kind, idx, n = it
        if kind == "W":
            slot = (idx % NSW) * WSL
            if n == 0:
                a(f"""
                s_add_u32 m0, s65, {slot}
                s_mul_i32 s24, s26, 98304
                s_add_u32 s24, s24, s30
                s_add_u32 s26, s26, 1
                s_cmp_eq_u32 s26, 20
                s_cselect_b32 s26, 0, s26
                """)
            if n == 3:
                a(f"""
                s_add_u32 m0, s65, {slot + 3072}
                s_add_u32 s24, s24, 49152
                """)
            a(f"buffer_load_dwordx4 v{1+n%3}, s[12:15], s24 offen offset:{1024*(n%3)} lds")
        elif kind == "X":
            slot = (idx % NSX) * XSL
            if n == 0:
                a(f"""
                s_add_u32 m0, s66, {slot}
                s_lshl_b32 s25, s27, 7
                s_add_u32 s25, s25, s31
                s_add_u32 s27, s27, 1
                s_cmp_eq_u32 s27, 10
                s_cselect_b32 s27, 0, s27
                """)
            if n == 4:
                a(f"""
                s_add_u32 m0, s66, {slot + 4096}
                s_add_u32 s25, s25, {32*1280}
                """)
            a(f"buffer_load_dwordx4 v{4+n%4}, s[8:11], s25 offen offset:{1024*(n%4)} lds")
        else:
            slot = (idx % NSW) * WSL
            if n == 0:
                a(f"""
                s_lshr_b32 s24, s2, 1
                s_lshl_b32 s24, s24, 4
                s_lshl_b32 s25, s3, 3
                s_add_u32 s24, s24, s25
                s_mul_i32 s24, s24, 1280
                s_mul_i32 s25, s60, 640
                s_add_u32 s24, s24, s25
                s_mul_i32 s25, s3, 5120
                """)
                srd(a, 16, 52, 53, 1536*1280)
            a(f"""
            v_add_u32 v20, {64*n}, v0
            v_mul_u32_u24 v21, 52429, v20
            v_lshrrev_b32 v21, 21, v21
            v_mul_u32_u24 v22, 40, v21
            v_sub_u32 v22, v20, v22
            v_mul_u32_u24 v21, 1280, v21
            v_lshl_add_u32 v20, v22, 4, v21
            s_add_u32 m0, s25, {slot + 1024*n}
            s_nop 0
            buffer_load_dwordx4 v20, s[16:19], s24 offen lds
            """)
        q.append((kind, idx))
    def allowed(it, after):
        kind, idx, n = it
        if kind in "WR": return idx < NSW or idx - NSW + 1 <= after
        return idx < NSX or 2 * (idx - NSX + 1) <= after
    def waitfor(t):
        want = [("W", t), ("X", t // 2)] if t < 20 else [("R", 20)]
        idxs = [i for i, tg in enumerate(q) if tg in want]
        if not idxs: return
        n = len(q) - 1 - max(idxs)
        a(f"s_waitcnt vmcnt({min(n,63)})")
    k = 0
    while k < P:
        assert allowed(items[k], -1)
        issue(items[k]); k += 1
    for t in range(NBAR):
        need = [it for it in items[k:] if (it[0] == "W" and it[1] <= t) or (it[0] == "X" and it[1] <= t // 2) or (it[0] == "R" and t >= 20)]
        assert not need, (t, need)
        waitfor(t)
        bar(a, t)
        n = 0
        while k < len(items) and n < quota and allowed(items[k], t):
            issue(items[k]); k += 1; n += 1
    assert k == len(items)
    trace_end(a)
    a("s_endpgm")

    a.label("L1notload")
    a("""
    s_cmp_ge_u32 s3, 8
    s_cbranch_scc1 L1cs
    s_cmp_lt_u32 s3, 4
    s_cbranch_scc1 L1misc
    """)
    FA, XA, FB, XBr, ACC = 16, 40, 44, 68, 72
    a("s_sub_u32 s3, s3, 4")
    if stamps: a("s_memtime s[80:81]")
    trlane(a, 1, 10, 192)
    a(f"""
    v_and_b32 v10, 31, v0
    v_lshrrev_b32 v11, 5, v0
    v_bfe_u32 v12, v10, 1, 3
    v_xor_b32 v12, v12, v11
    v_lshlrev_b32 v12, 4, v12
    v_lshl_add_u32 v2, v10, 7, v12
    s_lshl_b32 s64, s3, 12
    s_add_u32 s64, s64, {XB}
    v_add_u32 v2, s64, v2
    v_xor_b32 v3, 32, v2
    v_xor_b32 v7, 64, v2
    v_xor_b32 v8, 96, v2
    v_lshrrev_b32 v12, 4, v10
    v_mul_u32_u24 v12, {48*1024}, v12
    v_lshl_add_u32 v12, v11, 8, v12
    v_and_b32 v13, 15, v10
    v_lshl_add_u32 v12, v13, 4, v12
    s_lshl_b32 s64, s3, 8
    s_add_u32 s64, s64, {STATS}
    v_lshl_add_u32 v13, v10, 3, s64
    v_lshlrev_b32 v14, 3, v0
    v_add_u32 v14, {EXT}, v14
    s_lshl_b32 s64, s4, 3
    s_lshl_b32 s65, s3, 1
    s_add_u32 s64, s64, s65
    s_mul_i32 s64, s64, 48
    s_mul_i32 s65, s5, 3
    s_add_u32 s64, s64, s65
    s_lshl_b32 s64, s64, 10
    s_add_u32 s64, s64, {WS_H}
    s_setprio 2
    s_waitcnt lgkmcnt(0)
    """)
    srd(a, 16, 58, 59, WS_SIZE)
    def reads(F, X, s2, xreg, wreg=4, woff=0):
        o = [f"ds_read_b128 {vr(X,4)}, v{xreg}"]
        for t in range(6):
            ft, u = t >> 1, t & 1
            off = woff + s2 * 3072 + ft * 64 + u * 6144
            o.append(f"ds_read_b64_tr_b16 {vr(F+4*t,2)}, v{wreg} offset:{off}")
            o.append(f"ds_read_b64_tr_b16 {vr(F+4*t+2,2)}, v{wreg} offset:{off+768}")
        return o
    def mf(F, X, zero=False):
        return [f"v_mfma_f32_32x32x16_bf16 {vr(ACC+16*t,16)}, {vr(F+4*t,4)}, {vr(X,4)}, {'0' if zero else vr(ACC+16*t,16)}" for t in range(6)]
    a("s_barrier")
    for x in reads(FA, XA, 0, 2, wreg=1): a(x)
    a(f"""
    s_mov_b32 s27, {WSL}
    s_mov_b32 s29, 0
    s_mov_b32 s28, 0
    v_mov_b32 v9, v7
    v_mov_b32 v10, v8
    s_waitcnt lgkmcnt(0)
    """)
    for x in interleave(mf(FA, XA, zero=True), reads(FB, XBr, 1, 3, wreg=1), pat): a(x)
    a("s_waitcnt lgkmcnt(0)")
    def stage(odd):
        a("v_add_u32 v4, s27, v1")
        a("s_barrier")
        for x in interleave(mf(FB, XBr), reads(FA, XA, 0, 9 if odd else 5), pat): a(x)
        a(f"""
        s_add_u32 s27, s27, {WSL}
        s_cmp_eq_u32 s27, {WSL*NSW}
        s_cselect_b32 s27, 0, s27
        """)
        if odd:
            a(f"""
            s_add_u32 s29, s29, {XSL}
            s_cmp_eq_u32 s29, {XSL*NSX}
            s_cselect_b32 s29, 0, s29
            """)
        a("s_waitcnt lgkmcnt(0)")
        fill = reads(FB, XBr, 1, 10 if odd else 6)
        if odd:
            fill += ["v_add_u32 v5, s29, v2", "v_add_u32 v6, s29, v3"]
        else:
            fill += ["v_add_u32 v9, s29, v7", "v_add_u32 v10, s29, v8", "s_add_u32 s28, s28, 1", "s_cmp_lt_u32 s28, 9"]
        p2 = list(pat); p2[4] += 4
        for x in interleave(mf(FA, XA), fill, p2): a(x)
        a("s_waitcnt lgkmcnt(0)")
    a.label("L1g1loop")
    stage(True)
    stage(False)
    a("s_cbranch_scc1 L1g1loop")
    stage(True)
    a("s_barrier")
    fill = [f"ds_read_b64 {vr(FA+4*t,2)}, v14 offset:{512*t}" for t in range(6)] + ["ds_read_b64 v[2:3], v13"]
    fill += [f"v_mov_b32 v{FA+4*t+2+e}, 0" for t in range(6) for e in range(2)] + [f"v_mov_b32 v{XA+2}, 0", f"v_mov_b32 v{XA+3}, 0"]
    fill += ["s_waitcnt lgkmcnt(0)", f"v_lshrrev_b32 v{XA+1}, 16, v2", f"v_xor_b32 v{XA+1}, 0x8000, v{XA+1}",
             f"v_lshl_or_b32 v{XA}, v{XA+1}, 16, v{XA+1}", "v_rcp_f32 v4, v3", "v_mov_b32 v6, v3", "v_mul_f32 v4, 0xbfb8aa3b, v4"]
    for x in interleave(mf(FB, XBr), fill, (5, 5, 5, 5, 4, 4)): a(x)
    for x in mf(FA, XA): a(x)
    if stamps: a("s_memtime s[82:83]")
    for ft in range(3):
        G = ACC + 32 * ft; U = G + 16
        for sp in range(2):
            b = FB + 12 * ((ft * 2 + sp) & 1)
            for e in range(0, 8, 2): a(f"v_pk_mul_f32 {vr(b+e,2)}, v[4:5], {vr(G+8*sp+e,2)} op_sel_hi:[0,1]")
            for e in range(8): a(f"v_exp_f32 v{b+e}, v{b+e}")
            for e in range(0, 8, 2): a(f"v_pk_fma_f32 {vr(b+e,2)}, {vr(b+e,2)}, v[6:7], v[6:7] op_sel_hi:[1,0,0]")
            for e in range(8): a(f"v_rcp_f32 v{b+e}, v{b+e}")
            for e in range(0, 8, 2): a(f"v_pk_mul_f32 {vr(b+e,2)}, {vr(b+e,2)}, {vr(U+8*sp+e,2)}")
            for e in range(4): a(f"v_cvt_pk_bf16_f32 v{b+8+e}, v{b+2*e}, v{b+2*e+1}")
            a(f"buffer_store_dwordx4 {vr(b+8,4)}, v12, s[16:19], s64 offen offset:{ft*1024+sp*512}")
    if stamps:
        a(f"""
        s_memtime s[84:85]
        s_waitcnt vmcnt(0)
        s_memtime s[86:87]
        s_waitcnt lgkmcnt(0)
        s_sub_u32 s82, s82, s80
        s_sub_u32 s84, s84, s80
        s_sub_u32 s86, s86, s80
        v_mov_b32 v16, s80
        v_mov_b32 v17, s82
        v_mov_b32 v18, s84
        v_mov_b32 v19, s86
        s_lshl_b32 s64, s2, 7
        s_lshl_b32 s65, s3, 4
        s_add_u32 s64, s64, s65
        s_add_u32 s64, s64, 0x8000000
        v_mov_b32 v20, 0
        buffer_store_dwordx4 v[16:19], v20, s[16:19], s64 offen
        """)
    a("s_endpgm")

    a.label("L1misc")
    gen_misc(a, do_xnt, st_flag, st_poll, st_chk, fmode)
    a.label("L1cs")
    gen_cs(a, do_kgen, do_repack, kper, csprio)
    a.label("L1end")
    lines, n = hazard.fix(a.l)
    a.l = lines
    return a.text()

def bf16r(a, v):
    a(f"v_cvt_pk_bf16_f32 v{v}, v{v}, v{v}")
    a(f"v_lshlrev_b32 v{v}, 16, v{v}")

def rowsum16(a, v, op="add"):
    for m in ("quad_perm:[1,0,3,2]", "quad_perm:[2,3,0,1]", "row_half_mirror", "row_mirror"):
        a(f"v_{op}_f32_dpp v{v}, v{v}, v{v} {m} row_mask:0xf bank_mask:0xf")

def gen_misc(a, do_xnt, st_flag, st_poll, st_chk, fmode):
    a(f"""
    s_sub_u32 s3, s3, 2
    v_lshrrev_b32 v1, 4, v0
    v_and_b32 v2, 15, v0
    v_mul_u32_u24 v3, 1280, v1
    v_lshl_add_u32 v3, v2, 4, v3
    s_lshl_b32 s64, s4, 7
    s_lshl_b32 s65, s5, 3
    s_add_u32 s64, s64, s65
    s_lshl_b32 s65, s3, 2
    s_add_u32 s64, s64, s65
    s_mul_i32 s65, s64, 1280
    s_lshl_b32 s66, s64, 3
    s_add_u32 s66, s66, {WS_STATS}
    v_lshlrev_b32 v4, 3, v1
    s_waitcnt lgkmcnt(0)
    """)
    srd(a, 8, 32, 33, 2048*1280)
    srd(a, 16, 58, 59, WS_SIZE)
    srd(a, 20, 56, 57, 256)
    X = 16
    for it in range(5):
        a(f"buffer_load_dwordx4 {vr(X+4*it,4)}, v3, s[8:11], s65 offen offset:{256*it}")
    bg = A()
    F = 40
    bg("s_waitcnt vmcnt(0)")
    for d in range(20):
        bg(f"v_lshlrev_b32 v{F+2*d}, 16, v{X+d}")
        bg(f"v_and_b32 v{F+2*d+1}, 0xffff0000, v{X+d}")
    for c in range(4): bg(f"v_add_f32 v{8+c}, v{F+c}, v{F+4+c}")
    for e in range(8, 40): bg(f"v_add_f32 v{8+e%4}, v{8+e%4}, v{F+e}")
    bg("v_add_f32 v8, v8, v9\nv_add_f32 v10, v10, v11\nv_add_f32 v8, v8, v10")
    rowsum16(bg, 8)
    bg("v_mul_f32 v8, 0x3acccccd, v8")
    for e in range(40): bg(f"v_sub_f32 v{F+e}, v{F+e}, v8")
    for c in range(4): bg(f"v_mul_f32 v{10+c}, v{F+c}, v{F+c}")
    for e in range(4, 40): bg(f"v_fmac_f32 v{10+e%4}, v{F+e}, v{F+e}")
    bg("v_add_f32 v10, v10, v11\nv_add_f32 v12, v12, v13\nv_add_f32 v9, v10, v12")
    rowsum16(bg, 9)
    bg("v_mul_f32 v9, 0x3acccccd, v9")
    bf16r(bg, 8)
    bf16r(bg, 9)
    bg("v_add_f32 v9, 0x3727c5ac, v9")
    bf16r(bg, 9)
    bg("v_sqrt_f32 v9, v9")
    bf16r(bg, 9)
    atomic(bg, """
    s_mov_b32 exec_lo, 0x00010001
    s_mov_b32 exec_hi, 0x00010001
    buffer_store_dwordx2 v[8:9], v4, s[16:19], s66 offen sc1
    s_mov_b64 exec, -1
    """)
    bg(f"""
    s_lshl_b32 s67, s4, 4
    s_add_u32 s68, s67, s5
    v_mov_b32 v5, 0
    v_mov_b32 v6, 1
    s_lshl_b32 s69, s4, 10
    s_lshl_b32 s70, s3, 9
    s_add_u32 s69, s69, s70
    s_add_u32 s69, s69, {WS_STATS}
    v_lshlrev_b32 v7, 3, v0
    v_add_u32 v12, s70, v7
    v_add_u32 v12, {STATS}, v12
    """)
    bg.l.append(("atleast", st_flag - 1))
    bg("s_waitcnt vmcnt(0)")
    bg.l.append(("break",))
    flagop = {"byte": "buffer_store_byte v6, v5, s[20:23], s68 offen sc1",
              "atomic": "buffer_atomic_add v6, v5, s[20:23], s67 offen sc1",
              "none": "s_nop 0", "nopoll": "buffer_store_byte v6, v5, s[20:23], s68 offen sc1", "atomic_nopoll": "buffer_atomic_add v6, v5, s[20:23], s67 offen sc1",
              "pollonly": "s_nop 0"}[fmode]
    atomic(bg, f"""
    s_cmp_eq_u32 s3, 0
    s_cbranch_scc0 L1noflag
    s_mov_b64 exec, 1
    {flagop}
    s_mov_b64 exec, -1
    L1noflag:
    """)
    bg.l.append(("atleast", st_poll))
    if fmode in ("byte", "atomic", "pollonly"):
        bg("buffer_load_dwordx4 v[80:83], v5, s[20:23], s67 offen sc1")
    bg.l.append(("atleast", st_chk))
    if fmode in ("byte", "atomic"):
        red = "v_and_b32 v80, v80, v81\nv_and_b32 v82, v82, v83\nv_and_b32 v80, v80, v82" if fmode == "byte" else "s_nop 0"
        atomic(bg, f"""
        s_mov_b32 s71, 0
        L1poll:
        s_waitcnt vmcnt(0)
        {red}
        v_readfirstlane_b32 s72, v80
        s_cmp_eq_u32 s72, {0x01010101 if fmode == "byte" else 16}
        s_cbranch_scc1 L1pollok
        s_add_u32 s71, s71, 1
        s_cmp_gt_u32 s71, 0x40000
        s_cbranch_scc1 L1pollok
        s_sleep 2
        buffer_load_dwordx4 v[80:83], v5, s[20:23], s67 offen sc1
        s_branch L1poll
        L1pollok:
        """)
    bg("buffer_load_dwordx2 v[8:9], v7, s[16:19], s69 offen sc1")
    bg.l.append(("atleast", st_chk + 2))
    bg(f"""
    s_waitcnt vmcnt(0)
    v_rcp_f32 v11, v9
    v_mov_b32 v10, v8
    ds_write_b64 v12, v[8:9]
    ds_write_b64 v12, v[10:11] offset:1024
    s_waitcnt lgkmcnt(0)
    """)
    pre = None
    if do_xnt:
        setup = A()
        setup(f"""
        v_bfe_u32 v116, v0, 2, 2
        v_lshrrev_b32 v117, 4, v0
        v_lshl_add_u32 v118, v117, 3, v116
        v_lshlrev_b32 v118, 7, v118
        v_and_b32 v119, 1, v0
        v_lshl_add_u32 v118, v119, 3, v118
        v_and_b32 v117, 1, v117
        v_lshlrev_b32 v117, 2, v117
        v_lshrrev_b32 v116, 1, v116
        v_or_b32 v117, v117, v116
        v_bfe_u32 v119, v0, 1, 1
        v_xor_b32 v117, v117, v119
        s_lshl_b32 s73, s63, 14
        s_lshl_b32 s74, s3, 13
        s_add_u32 s73, s73, s74
        s_add_u32 s73, s73, {XB}
        v_add_u32 v118, s73, v118
        """)
        for x in range(4):
            setup(f"v_xor_b32 v116, {2*x}, v117")
            setup(f"v_lshl_add_u32 v{120+x}, v116, 4, v118")
        setup("""
        s_cmp_lt_u32 s61, 2
        s_cselect_b32 s75, 3, 2
        s_cmp_lt_u32 s63, s75
        s_cselect_b32 s75, s63, 100
        """)
        for x in setup.l: a(x)
        def pre(t):
            if t % 2 == 0 and t // 2 < 3:
                a(f"s_cmp_eq_u32 s75, {t//2}")
                a(f"s_cbranch_scc0 L1nocap{t}")
                for o in range(2):
                    for cg in range(4):
                        for hf in range(2):
                            a(f"ds_read_b64_tr_b16 {vr(84+16*o+4*cg+2*hf,2)}, v{120+(cg^hf)} offset:{o*4096+hf*512}")
                a("s_waitcnt lgkmcnt(0)")
                a.label(f"L1nocap{t}")
        atomic(bg, """
        s_cmp_eq_u32 s75, 100
        s_cbranch_scc1 L1noxnt
        """)
        bg(f"""
        v_lshrrev_b32 v13, 4, v0
        v_lshlrev_b32 v13, 6, v13
        v_add_u32 v13, s70, v13
        v_add_u32 v13, {STATS2}, v13
        s_add_u32 s76, s6, s63
        s_lshl_b32 s76, s76, 18
        s_lshl_b32 s77, s4, 8
        s_add_u32 s76, s76, s77
        s_lshl_b32 s77, s3, 7
        s_add_u32 s76, s76, s77
        s_add_u32 s76, s76, {WS_UT}
        v_and_b32 v14, 15, v0
        v_lshlrev_b32 v14, 12, v14
        v_lshrrev_b32 v15, 4, v0
        v_lshl_add_u32 v14, v15, 4, v14
        """)
        for o in range(2):
            for e in range(4): bg(f"ds_read_b128 {vr(40+16*o+4*e,4)}, v13 offset:{o*256+16*e}")
        bg("s_waitcnt lgkmcnt(0)")
        norm = A()
        for o in range(2):
            for cg in range(4):
                for d in range(4):
                    r = 84 + 16*o + 4*cg + d
                    s = 40 + 16*o + 4*d
                    t0 = 16 + 2 * (d & 1)
                    norm(f"""
                    v_lshlrev_b32 v{t0}, 16, v{r}
                    v_and_b32 v{t0+1}, 0xffff0000, v{r}
                    v_sub_f32 v{t0}, v{t0}, v{s}
                    v_sub_f32 v{t0+1}, v{t0+1}, v{s+2}
                    v_cvt_pk_bf16_f32 v{r}, v{t0}, v{t0+1}
                    v_lshlrev_b32 v{t0}, 16, v{r}
                    v_and_b32 v{t0+1}, 0xffff0000, v{r}
                    v_mul_f32 v{t0}, v{t0}, v{s+1}
                    v_mul_f32 v{t0+1}, v{t0+1}, v{s+3}
                    v_cvt_pk_bf16_f32 v{r}, v{t0}, v{t0+1}
                    """)
                norm(f"s_add_u32 s77, s76, {cg*65536}")
                norm(f"buffer_store_dwordx4 {vr(84+16*o+4*cg,4)}, v14, s[16:19], s77 offen offset:{o*64}")
        bg.l += norm.l
    sliced(a, bg.l, 70, pre=pre)
    if do_xnt: a.label("L1noxnt")
    trace_end(a)
    a("s_endpgm")

def gen_cs(a, do_kgen, do_repack, kper, csprio):
    SEL, CA, CF = 4, 8, 20
    a("s_sub_u32 s3, s3, 8")
    trlane(a, 1, 32, 192)
    a(f"""
    s_and_b32 s64, s3, 1
    s_lshr_b32 s65, s3, 1
    s_mul_i32 s66, s64, 3072
    s_mul_i32 s67, s65, 6144
    s_add_u32 s66, s66, s67
    v_add_u32 v1, s66, v1
    v_and_b32 v32, 15, v0
    v_bfe_u32 v33, v0, 4, 1
    v_cmp_eq_u32 vcc, v32, v33
    v_mov_b32 v33, 0x3f803f80
    v_cndmask_b32 v{SEL}, 0, v33, vcc
    v_mov_b32 v{SEL+1}, v{SEL}
    v_mov_b32 v{SEL+2}, v{SEL}
    v_mov_b32 v{SEL+3}, v{SEL}
    s_lshl_b32 s66, s64, 8
    s_lshl_b32 s67, s65, 9
    s_add_u32 s66, s66, s67
    s_add_u32 s66, s66, {EXT}
    v_lshl_add_u32 v2, v32, 3, s66
    v_cmp_gt_u32 vcc, 16, v0
    v_mov_b32 v33, {DUMMY}
    v_cndmask_b32 v2, v33, v2, vcc
    v_mov_b32 v3, 1024
    v_cndmask_b32 v3, 0, v3, vcc
    s_mov_b32 s68, 0x07060302
    s_waitcnt lgkmcnt(0)
    """)
    srd(a, 16, 58, 59, WS_SIZE)
    def pre(t):
        if t >= 20: return
        slot = (t % NSW) * WSL
        for ft in range(3):
            a(f"ds_read_b64_tr_b16 {vr(CF+4*ft,2)}, v1 offset:{slot+ft*64}")
            a(f"ds_read_b64_tr_b16 {vr(CF+4*ft+2,2)}, v1 offset:{slot+ft*64+768}")
    def post(t):
        if t >= 20: return
        a("s_waitcnt lgkmcnt(0)")
        if csprio: a("s_setprio 3")
        for ft in range(3):
            a(f"v_mfma_f32_16x16x32_bf16 {vr(CA+4*ft,4)}, {vr(SEL,4)}, {vr(CF+4*ft,4)}, {'0' if t == 0 else vr(CA+4*ft,4)}")
        if csprio and t < 19: a("s_setprio 0")
        if t == 19:
            for ft in range(3):
                for e in range(2):
                    S = CA + 4 * ft + e; T = CF + 4 * e
                    a(f"""
                    v_and_b32 v{T+2}, 0xffff0000, v{S}
                    v_sub_f32 v{T+2}, v{S}, v{T+2}
                    v_and_b32 v{T+3}, 0xffff0000, v{T+2}
                    v_sub_f32 v{T+3}, v{T+2}, v{T+3}
                    v_perm_b32 v{T}, v{T+2}, v{S}, s68
                    v_lshrrev_b32 v{T+1}, 16, v{T+3}
                    ds_write_b64 v2, {vr(T,2)} offset:{128*e}
                    """)
                if ft < 2: a("v_add_u32 v2, v2, v3")
            a("s_waitcnt lgkmcnt(0)")
    if do_kgen:
        a("""
        s_add_u32 s69, s3, s60
        s_cmp_ge_u32 s69, 3
        s_cbranch_scc1 L1csonly
        """)
        from kgen import kgen_prog
        head, bg = kgen_prog()
        for x in head: a(x)
        sliced(a, bg, lambda t: kper if t < 19 else 0, pre=pre, post=post)
        trace_end(a)
        a("s_endpgm")
        a.label("L1csonly")
    a(f"""
    s_lshl_b32 s69, s2, 7
    s_add_u32 s69, s69, {WS_FLAG}
    v_mov_b32 v40, 0
    v_mov_b32 v41, 0
    v_mov_b32 v42, 0
    v_mov_b32 v43, 0
    s_mov_b64 exec, 1
    buffer_store_dwordx4 v[40:43], v40, s[16:19], s69 offen
    s_mov_b64 exec, -1
    """)
    rb = A()
    if do_repack:
        rb(f"""
        v_bfe_u32 v40, v0, 4, 1
        v_bfe_u32 v41, v0, 2, 2
        v_lshl_add_u32 v40, v40, 2, v41
        v_mul_u32_u24 v40, 640, v40
        v_and_b32 v41, 3, v0
        v_lshl_add_u32 v42, v41, 4, v40
        v_lshl_add_u32 v43, v41, 3, v40
        v_cmp_lt_u32 vcc, 31, v0
        v_and_b32 v44, 31, v0
        v_lshlrev_b32 v44, 4, v44
        v_lshrrev_b32 v45, 5, v0
        v_lshl_add_u32 v44, v45, 10, v44
        s_lshr_b32 s69, s2, 2
        s_mul_i32 s69, s69, 40
        s_mul_i32 s70, s60, 20
        s_add_u32 s69, s69, s70
        s_lshl_b32 s69, s69, 10
        s_bfe_u32 s70, s2, 0x10001
        s_lshl_b32 s70, s70, 9
        s_add_u32 s69, s69, s70
        s_add_u32 s69, s69, {WS_WD}
        """)
        def coff(tt):
            nt, t = divmod(tt, 5)
            return (nt * 160 + ((t >> 1) * 64 + (t & 1) * 8 if t < 4 else 128), t < 4)
        for p in range(10):
            (o0, w0), (o1, w1) = coff(2*p), coff(2*p+1)
            rb(f"v_add_u32 v46, {o0}, v{42 if w0 else 43}")
            rb(f"v_add_u32 v47, {o1}, v{42 if w1 else 43}")
            rb(f"v_cndmask_b32 v{50+p}, v46, v47, vcc")
    sliced(a, rb.l, 30, pre=pre, post=post, nbar=20)
    trace_end(a)
    if do_repack:
        a("""
        s_cmp_lg_u32 s3, 3
        s_cbranch_scc1 L1end
        s_cmp_ge_u32 s2, 192
        s_cbranch_scc1 L1end
        """)
        a("s_barrier")
        slot = (20 % NSW) * WSL
        for p in range(10):
            a(f"ds_read_b64_tr_b16 {vr(64+4*p,2)}, v{50+p} offset:{slot}")
            a(f"ds_read_b64_tr_b16 {vr(64+4*p+2,2)}, v{50+p} offset:{slot+8*640}")
        for p in range(10):
            a(f"s_waitcnt lgkmcnt({min(15, 2*(9-p))})")
            if p and p % 2 == 0: a("s_add_u32 s69, s69, 4096")
            a(f"buffer_store_dwordx4 {vr(64+4*p,4)}, v44, s[16:19], s69 offen offset:{(p%2)*2048}")
    a("s_endpgm")
```

```python
from asmlib import *
import hazard
from k1 import srd

CS_U = 512
CS_R0 = 4608 + 128
CS_R1 = CS_R0 + 4160
CS_T = CS_R1 + 4160
CSLOT = CS_T + 1536
CSLOT = (CSLOT + 127) // 128 * 128
CONV0 = 128
RED = CONV0 + 6 * CSLOT
AOS = RED + 4 * 3 * 5 * 1024
LDS2 = AOS + 80 * 128
assert LDS2 <= 163840, LDS2

def conv_build(a, full, KR, sl):
    for k in range(10): a(f"v_add_u32 v{110+k}, s{sl}, v{100+k}")
    a(f"""
    ds_write_b64 v110, {vr(KR,2)}
    ds_write_b32 v111, v{KR+2}
    ds_write_b32 v112, v{KR+3}
    ds_write_b16 v113, v{KR+4}
    ds_write_b16_d16_hi v113, v{KR+4} offset:32
    ds_write_b16 v113, v{KR+5} offset:64
    ds_write_b16_d16_hi v113, v{KR+5} offset:96
    s_waitcnt lgkmcnt(0)
    ds_read2_b32 v[8:9], v115 offset0:0 offset1:1
    ds_read_b32 v10, v115 offset:8
    ds_read2_b32 v[12:13], v114 offset0:128 offset1:129
    ds_read2_b32 v[14:15], v114 offset0:192 offset1:193
    """)
    if full: a("ds_read_b32 v16, v114 offset:1024\nds_read_b32 v17, v114 offset:1028")
    a("s_waitcnt lgkmcnt(0)")
    D = R1O = CS_R1 - CS_R0
    a(f"""
    v_perm_b32 v20, v9, v9, s42
    v_perm_b32 v21, v8, v8, s42
    v_perm_b32 v22, v10, v9, s43
    v_perm_b32 v23, v9, v8, s43
    ds_write_b64 v119, v[20:21] offset:{D}
    ds_write_b64 v119, v[22:23]
    """)
    a(f"""
    v_perm_b32 v24, v13, v12, s43
    v_perm_b32 v25, v12, v12, s40
    v_perm_b32 v26, v13, v13, s40
    v_perm_b32 v27, v12, v12, s42
    ds_write_b64 v118, v[24:25] offset:{D}
    ds_write_b64 v118, v[26:27]
    """)
    a(f"""
    v_perm_b32 v28, v15, v15, s40
    v_perm_b32 v29, v14, v14, s41
    v_perm_b32 v30, v14, v14, s42
    v_perm_b32 v31, v14, v14, s40
    v_perm_b32 v32, v15, v15, s40
    v_perm_b32 v33, v15, v14, s43
    v_perm_b32 v34, v14, v14, s41
    v_perm_b32 v35, v14, v14, s40
    ds_write_b128 v117, v[28:31] offset:{D}
    ds_write_b128 v117, v[32:35]
    """)
    if full:
        a(f"""
        v_perm_b32 v36, v17, v17, s40
        v_perm_b32 v37, v17, v17, s40
        v_perm_b32 v38, v16, v16, s41
        v_perm_b32 v39, v16, v16, s41
        v_perm_b32 v40, v16, v16, s41
        v_perm_b32 v41, v16, v16, s42
        v_perm_b32 v42, v16, v16, s40
        v_perm_b32 v43, v16, v16, s40
        ds_write_b128 v116, v[36:39] offset:{D}
        ds_write_b128 v116, v[40:43] offset:{D+16}
        v_perm_b32 v44, v17, v17, s40
        v_perm_b32 v45, v17, v17, s40
        v_perm_b32 v46, v17, v16, s43
        v_perm_b32 v47, v16, v16, s41
        v_perm_b32 v48, v16, v16, s41
        v_perm_b32 v49, v16, v16, s41
        v_perm_b32 v50, v16, v16, s40
        v_perm_b32 v51, v16, v16, s40
        ds_write_b128 v116, v[44:47]
        ds_write_b128 v116, v[48:51] offset:16
        """)
    a(f"""
    v_add_u32 v121, s{sl}, v120
    v_readfirstlane_b32 s44, v8
    s_and_b32 s44, s44, 0xffff
    v_mov_b32 v52, s44
    v_cndmask_b32 v52, 0, v52, s[46:47]
    ds_write_b32 v121, v52
    v_add_u32 v121, s{sl}, v122
    ds_write_b64 v121, v[124:125]
    """)

def conv_main(a, cts, sl, name, wvm=True):
    mx = max(cts)
    np_ = mx + 1
    FA = [8, 8 + 64]; ACC = 200
    nar = (np_ + 1) // 2
    for q in range(nar): a(f"v_add_u32 v{140+q}, s{sl}, v{130+0}\nv_subrev_u32 v{140+q}, {512*(2*q+1)}, v{140+q}" if False else f"v_add_u32 v{140+q}, s{sl}, v{150+q}")
    a(f"v_add_u32 v144, s{sl}, v154")
    def reads(k):
        o = []
        for p in range(np_):
            q, off = p >> 1, (128 if p % 2 == 0 else 0)
            o.append(f"ds_read2_b32 {vr(FA[k]+4*p,2)}, v{140+q} offset0:{off} offset1:{off+1}")
            o.append(f"ds_read2_b32 {vr(FA[k]+4*p+2,2)}, v{140+q} offset0:{off+2} offset1:{off+3}")
            o.append(f"ds_read_b128 {vr(FA[k]+32+4*p,4)}, v144 offset:{512*p}")
        for q in range(nar): o.append(f"v_subrev_u32 v{140+q}, 64, v{140+q}")
        o.append("v_subrev_u32 v144, 64, v144")
        return o
    def mf(k):
        o = []
        for ci, ct in enumerate(cts):
            for p in range(ct + 1):
                o.append(f"v_mfma_f32_16x16x32_bf16 {vr(ACC+4*ci,4)}, {vr(FA[k]+4*p,4)}, {vr(FA[k]+32+4*(ct-p),4)}, {vr(ACC+4*ci,4)}")
        return o
    for r in range(ACC, ACC + 4 * len(cts)): a(f"v_mov_b32 v{r}, 0")
    a("s_waitcnt vmcnt(0) lgkmcnt(0)" if wvm else "s_waitcnt lgkmcnt(0)")
    for x in reads(0): a(x)
    a("s_mov_b32 s45, 0")
    a.label(name)
    for k in range(2):
        a("s_waitcnt lgkmcnt(0)")
        m = mf(k); f = reads(1 - k)
        per = 2 if len(f) > len(m) else 1
        for x in interleave(m, f, per): a(x)
    a(f"""
    s_add_u32 s45, s45, 1
    s_cmp_lt_u32 s45, 4
    s_cbranch_scc1 {name}
    s_waitcnt lgkmcnt(0)
    """)
    return ACC

def conv_store(a, cts, ACC, soff):
    i = 0; t = 8
    while i < len(cts):
        if i + 1 < len(cts) and cts[i+1] == cts[i] - 1:
            A0 = ACC + 4 * i; B0 = A0 + 4
            a(f"""
            v_cvt_pk_bf16_f32 v{t}, v{A0}, v{A0+1}
            v_cvt_pk_bf16_f32 v{t+1}, v{A0+2}, v{A0+3}
            v_cvt_pk_bf16_f32 v{t+2}, v{B0}, v{B0+1}
            v_cvt_pk_bf16_f32 v{t+3}, v{B0+2}, v{B0+3}
            v_permlane16_swap_b32 v{t}, v{t+2}
            v_permlane16_swap_b32 v{t+1}, v{t+3}
            buffer_store_dwordx4 {vr(t,4)}, v160, s[16:19], s{soff} offen offset:{512*(cts[i]-1)} sc1
            """)
            i += 2; t += 4
        else:
            A0 = ACC + 4 * i
            a(f"""
            v_cvt_pk_bf16_f32 v{t}, v{A0}, v{A0+1}
            v_cvt_pk_bf16_f32 v{t+1}, v{A0+2}, v{A0+3}
            buffer_store_dwordx2 {vr(t,2)}, v161, s[16:19], s{soff} offen offset:{512*cts[i]} sc1
            """)
            i += 1; t += 2

def gen(DEPTH=4, stamps=False, cprio=0, gprio=0):
    a = A()
    a(f"""
    s_cmp_ge_u32 s2, 256
    s_cbranch_scc1 L2end
    s_load_dwordx2 s[32:33], s[0:1], {KA['x']}
    s_load_dwordx2 s[34:35], s[0:1], {KA['out']}
    s_load_dwordx2 s[58:59], s[0:1], {KA['ws']}
    v_lshrrev_b32 v1, 6, v0
    v_and_b32 v0, 63, v0
    v_readfirstlane_b32 s3, v1
    s_and_b32 s60, s2, 3
    s_bfe_u32 s61, s2, 0x10002
    s_bfe_u32 s62, s2, 0x30003
    s_lshr_b32 s63, s2, 6
    s_lshl_b32 s4, s60, 3
    s_add_u32 s4, s4, s62
    s_lshl_b32 s5, s61, 2
    s_add_u32 s5, s5, s63
    v_lshlrev_b32 v1, 4, v0
    s_cmp_ge_u32 s3, 4
    s_cbranch_scc1 L2g2
    """)
    if stamps: a("s_memtime s[80:81]")
    a(f"""
    s_setprio {cprio}
    s_and_b32 s6, s2, 1
    s_lshr_b32 s7, s2, 1
    s_mul_i32 s7, s7, 5
    s_mul_i32 s64, s6, 3
    s_add_u32 s7, s7, s64
    s_sub_u32 s64, 3, s6
    s_sub_u32 s65, s3, s64
    s_cmp_lt_u32 s3, s64
    s_cselect_b32 s65, s3, s65
    s_cselect_b32 s66, 1, 0
    s_add_u32 s7, s7, s65
    s_mul_i32 s67, s3, {CSLOT}
    s_add_u32 s67, s67, {CONV0}
    s_cmp_eq_u32 s6, 0
    s_cselect_b32 s68, 3, 1
    s_lshl_b32 s69, s7, 12
    s_add_u32 s70, s69, {WS_UT}
    s_add_u32 s71, s69, {WS_AO}
    s_lshl_b32 s72, s7, 11
    s_add_u32 s72, s72, {WS_K}
    v_lshlrev_b32 v2, 3, v0
    s_waitcnt lgkmcnt(0)
    """)
    srd(a, 16, 58, 59, WS_SIZE)
    def loads(job, nu):
        KR = 170 + 6 * job
        a(f"""
        buffer_load_dwordx4 {vr(KR,4)}, v1, s[16:19], s72 offen
        buffer_load_dwordx2 {vr(KR+4,2)}, v2, s[16:19], s72 offen offset:1024
        s_add_u32 m0, s67, {CS_U + job*CSLOT}
        s_add_u32 s72, s72, 2048
        """)
        for n in range(nu): a(f"buffer_load_dwordx4 v1, s[16:19], s70 offen offset:{1024*n} lds")
        a("s_add_u32 s70, s70, 4096")
    def setup():
        a(f"""
        v_and_b32 v3, 15, v0
        v_lshrrev_b32 v4, 4, v0
        v_lshrrev_b32 v5, 1, v4
        v_and_b32 v6, 1, v4
        v_lshlrev_b32 v100, 8, v5
        v_lshl_add_u32 v100, v3, 4, v100
        v_lshl_add_u32 v100, v6, 3, v100
        v_add_u32 v100, {CS_T}, v100
        v_lshlrev_b32 v7, 7, v6
        v_lshl_add_u32 v101, v3, 3, v7
        v_add_u32 v101, {CS_T+512}, v101
        v_add_u32 v102, 4, v101
        v_lshl_add_u32 v8, v3, 2, v7
        v_add_u32 v8, {CS_T+768}, v8
        v_add_u32 v9, 64, v8
        v_cmp_lt_u32 vcc, 31, v0
        v_cndmask_b32 v101, v101, v8, vcc
        v_cndmask_b32 v102, v102, v9, vcc
        v_lshlrev_b32 v103, 7, v4
        v_lshl_add_u32 v103, v3, 1, v103
        v_add_u32 v103, {CS_T+1024}, v103
        v_lshlrev_b32 v104, 2, v0
        v_add_u32 v104, {CS_T}, v104
        v_add_u32 v105, {CS_T}, v2
        v_lshlrev_b32 v8, 5, v0
        v_sub_u32 v106, {CS_R0 + 2048 - 32}, v8
        v_sub_u32 v107, {CS_R0 + 3072 - 16}, v1
        v_sub_u32 v108, {CS_R0 + 3584 - 8}, v2
        v_sub_u32 v109, {CS_R0 + 4096 - 8}, v2
        v_and_b32 v8, 7, v0
        v_bfe_u32 v9, v0, 3, 1
        v_mul_u32_u24 v9, {CS_R1-CS_R0}, v9
        v_lshl_add_u32 v120, v8, 2, v9
        v_add_u32 v120, {CS_R0+4096}, v120
        v_cmp_eq_u32 s[46:47], 0, v3
        v_mov_b32 v122, v2
        v_mov_b32 v124, 0
        v_mov_b32 v125, 0
        s_mov_b32 s40, 0x01000100
        s_mov_b32 s41, 0x03020302
        s_mov_b32 s42, 0x01000302
        s_mov_b32 s43, 0x03020504
        v_and_b32 v8, 1, v3
        v_add_u32 v9, v3, v8
        v_mul_u32_u24 v8, {CS_R1-CS_R0}, v8
        v_lshlrev_b32 v10, 3, v4
        v_sub_u32 v10, v10, v9
        v_lshl_add_u32 v10, v10, 1, v8
        v_add_u32 v150, {CS_R0 + 4064 - 512}, v10
        v_add_u32 v151, {CS_R0 + 4064 - 512*3}, v10
        v_add_u32 v152, {CS_R0 + 4064 - 512*5}, v10
        v_add_u32 v153, {CS_R0 + 4064 - 512*7}, v10
        v_lshl_add_u32 v10, v3, 1, v4
        v_lshlrev_b32 v10, 4, v10
        v_add_u32 v154, {CS_U - 32}, v10
        v_lshlrev_b32 v160, 5, v3
        v_lshl_add_u32 v161, v4, 3, v160
        v_lshl_add_u32 v160, v5, 4, v160
        v_xor_b32 v6, 1, v6
        v_lshl_add_u32 v160, v6, 9, v160
        """)
    a("s_cmp_eq_u32 s66, 0\ns_cbranch_scc1 L2v2")
    loads(0, 4)
    setup()
    a("s_waitcnt vmcnt(4)")
    conv_build(a, True, 170, 67)
    ACC = conv_main(a, [7, 6, 5, 4, 0], 67, "L2v1loop")
    conv_store(a, [7, 6, 5, 4, 0], ACC, 71)
    a("s_branch L2cdone")
    a.label("L2v2")
    loads(0, 2)
    a("s_cmp_eq_u32 s68, 1\ns_cbranch_scc1 L2v2a")
    loads(1, 2)
    loads(2, 2)
    a.label("L2v2a")
    setup()
    a("s_waitcnt vmcnt(0)")
    conv_build(a, False, 170, 67)
    a("s_cmp_eq_u32 s68, 1\ns_cbranch_scc1 L2v2b")
    a(f"s_add_u32 s73, s67, {CSLOT}")
    conv_build(a, False, 176, 73)
    a(f"s_add_u32 s73, s67, {2*CSLOT}")
    conv_build(a, False, 182, 73)
    a.label("L2v2b")
    ACC = conv_main(a, [3, 2, 1], 67, "L2v2loop", wvm=False)
    conv_store(a, [3, 2, 1], ACC, 71)
    a(f"""
    s_add_u32 s67, s67, {CSLOT}
    s_add_u32 s71, s71, 4096
    s_sub_u32 s68, s68, 1
    s_cmp_lg_u32 s68, 0
    s_cbranch_scc1 L2v2b
    """)
    a.label("L2cdone")
    if stamps: a("s_memtime s[82:83]")
    a(f"""
    s_lshl_b32 s64, s2, 7
    s_lshl_b32 s65, s3, 2
    s_add_u32 s64, s64, s65
    s_add_u32 s64, s64, {WS_FLAG}
    v_mov_b32 v8, 0
    v_mov_b32 v9, 1
    s_waitcnt vmcnt(0)
    s_mov_b64 exec, 1
    buffer_store_dword v9, v8, s[16:19], s64 offen sc1
    s_mov_b64 exec, -1
    """)
    if stamps: a("s_memtime s[84:85]")
    a(f"""
    s_cmp_lg_u32 s3, 2
    s_cbranch_scc1 L2cend
    s_lshl_b32 s64, s5, 12
    s_add_u32 s64, s64, {WS_FLAG}
    v_and_b32 v8, 31, v0
    v_lshlrev_b32 v8, 7, v8
    s_mov_b32 s65, 0
    L2poll:
    buffer_load_dwordx4 v[12:15], v8, s[16:19], s64 offen sc1
    s_waitcnt vmcnt(0)
    v_and_b32 v12, v12, v13
    v_and_b32 v14, v14, v15
    v_and_b32 v12, v12, v14
    v_cmp_ne_u32 vcc, 1, v12
    s_cmp_eq_u64 vcc, 0
    s_cbranch_scc1 L2pollok
    s_add_u32 s65, s65, 1
    s_cmp_gt_u32 s65, 0x40000
    s_cbranch_scc1 L2pollok
    s_sleep 4
    s_branch L2poll
    L2pollok:
    s_mul_i32 s64, s5, {80*4096}
    s_lshl_b32 s65, s4, 7
    s_add_u32 s64, s64, s65
    s_add_u32 s64, s64, {WS_AO}
    v_lshrrev_b32 v8, 3, v0
    v_lshlrev_b32 v8, 12, v8
    v_and_b32 v9, 7, v0
    v_lshl_add_u32 v8, v9, 4, v8
    v_add_u32 v9, {AOS}, v1
    """)
    for n in range(10):
        a(f"buffer_load_dwordx4 {vr(16+4*n,4)}, v8, s[16:19], s64 offen sc1")
        if n < 9: a("s_add_u32 s64, s64, 32768")
    for n in range(10):
        a(f"s_waitcnt vmcnt({9-n})")
        a(f"ds_write_b128 v9, {vr(16+4*n,4)} offset:{1024*n}")
    a("s_waitcnt lgkmcnt(0)")
    a.label("L2cend")
    def dump():
        a(f"""
        s_memtime s[86:87]
        s_waitcnt lgkmcnt(0)
        s_sub_u32 s82, s82, s80
        s_sub_u32 s84, s84, s80
        s_sub_u32 s86, s86, s80
        v_mov_b32 v16, s80
        v_mov_b32 v17, s82
        v_mov_b32 v18, s84
        v_mov_b32 v19, s86
        s_lshl_b32 s64, s2, 7
        s_lshl_b32 s65, s79, 4
        s_add_u32 s64, s64, s65
        s_add_u32 s64, s64, 0xA000000
        v_mov_b32 v20, 0
        buffer_store_dwordx4 v[16:19], v20, s[16:19], s64 offen
        """)
    if stamps:
        a("s_mov_b32 s79, s3"); dump()
    a("s_endpgm")

    a.label("L2g2")
    if stamps: a("s_memtime s[80:81]\ns_mov_b32 s79, s3")
    a(f"""
    s_setprio {gprio}
    s_sub_u32 s3, s3, 4
    s_mul_i32 s64, s3, {12*40}
    s_mul_i32 s65, s5, 5
    s_add_u32 s64, s64, s65
    s_lshl_b32 s64, s64, 10
    s_add_u32 s64, s64, {WS_WD}
    v_add_u32 v2, 4096, v1
    s_mul_i32 s65, s3, {12*1024}
    s_add_u32 s65, s65, {WS_H}
    """)
    for mi in range(4):
        a(f"""
        s_add_u32 s66, s3, {mi}
        s_and_b32 s66, s66, 3
        s_lshl_b32 s67, s4, 2
        s_add_u32 s66, s66, s67
        s_mul_i32 s66, s66, {48*1024}
        s_add_u32 s{68+mi}, s66, s65
        """)
    a("s_waitcnt lgkmcnt(0)")
    srd(a, 16, 58, 59, WS_SIZE)
    ACC = 16; BUF = 96
    q = []
    def ldW(s, t):
        b = BUF + 36 * (s % DEPTH) + 4 * t
        if t == 0 and s > 0: a(f"s_add_u32 s64, s64, {40*1024}")
        a(f"buffer_load_dwordx4 {vr(b,4)}, v{2 if t == 4 else 1}, s[16:19], s64 offen offset:{0 if t == 4 else 1024*t}")
        q.append(s)
    def ldH(s, mi):
        b = BUF + 36 * (s % DEPTH) + 20 + 4 * mi
        if s % 4 == 0 and s > 0: a(f"s_add_u32 s{68+mi}, s{68+mi}, 4096")
        a(f"buffer_load_dwordx4 {vr(b,4)}, v1, s[16:19], s{68+mi} offen offset:{1024*(s%4)}")
        q.append(s)
    for s in range(DEPTH):
        for t in range(5): ldW(s, t)
        for mi in range(4): ldH(s, mi)
    srd(a, 8, 32, 33, 2048*1280)
    srd(a, 12, 34, 35, 2048*1280)
    a(f"""
    v_and_b32 v3, 15, v0
    v_lshrrev_b32 v4, 4, v0
    v_mul_u32_u24 v5, 1280, v3
    v_lshl_add_u32 v6, v4, 3, v5
    v_lshl_add_u32 v5, v4, 4, v5
    s_lshl_b32 s72, s4, 6
    s_lshl_b32 s73, s3, 4
    s_add_u32 s72, s72, s73
    s_mul_i32 s72, s72, 1280
    s_mul_i32 s73, s5, 160
    s_add_u32 s72, s72, s73
    s_mul_i32 s73, s3, {15*1024}
    v_add_u32 v7, s73, v1
    v_add_u32 v7, {RED}, v7
    v_bfe_u32 v8, v0, 2, 2
    v_and_b32 v9, 3, v0
    v_lshl_add_u32 v10, v4, 3, v8
    v_lshl_add_u32 v11, v4, 2, v8
    v_lshlrev_b32 v10, 7, v10
    v_lshlrev_b32 v11, 7, v11
    s_lshl_b32 s73, s3, 5
    s_add_u32 s73, s73, {AOS}
    v_lshl_add_u32 v9, v9, 3, s73
    v_add_u32 v10, v10, v9
    v_add_u32 v11, v11, v9
    """)
    for k in range(1, 4):
        a(f"""
        s_add_u32 s73, s3, {k}
        s_and_b32 s73, s73, 3
        s_mul_i32 s73, s73, {15*1024}
        s_add_u32 s73, s73, {RED + (k-1)*5*1024}
        v_add_u32 v{11+k}, s73, v1
        """)
    XR = 240
    for s in range(12):
        last = max(i for i, x in enumerate(q) if x == s)
        a(f"s_waitcnt vmcnt({len(q)-1-last})")
        b = BUF + 36 * (s % DEPTH)
        for t in range(5):
            for mi in range(4):
                c = vr(ACC + 4 * (4 * t + mi), 4)
                a(f"v_mfma_f32_16x16x32_bf16 {c}, {vr(b+4*t,4)}, {vr(b+20+4*mi,4)}, {'0' if s == 0 else c}")
            if s + DEPTH < 12: ldW(s + DEPTH, t)
        if s + DEPTH < 12:
            for mi in range(4): ldH(s + DEPTH, mi)
        if s == 12 - DEPTH:
            a(f"""
            buffer_load_dwordx4 {vr(XR,4)}, v5, s[8:11], s72 offen
            buffer_load_dwordx4 {vr(XR+4,4)}, v5, s[8:11], s72 offen offset:64
            buffer_load_dwordx2 {vr(XR+8,2)}, v6, s[8:11], s72 offen offset:128
            """)
            q.extend([99, 99, 99])
    if stamps: a("s_memtime s[82:83]")
    for t in range(5):
        for mi in range(1, 4):
            a(f"ds_write_b128 v{11+mi}, {vr(ACC+4*(4*t+mi),4)} offset:{1024*t}")
    a("s_waitcnt lgkmcnt(0)\ns_barrier")
    if stamps: a("s_memtime s[84:85]")
    R = BUF
    for k in range(3):
        for t in range(5):
            a(f"ds_read_b128 {vr(R+4*(5*k+t),4)}, v7 offset:{1024*(5*k+t)}")
    AO = R + 60
    a("s_waitcnt lgkmcnt(10)")
    for t in range(5):
        if t < 4: a(f"ds_read_b64_tr_b16 {vr(AO+2*t,2)}, v10 offset:{((t>>1)*32 + (t&1)*4)*128}")
        else: a(f"ds_read_b64_tr_b16 {vr(AO+2*t,2)}, v11 offset:{64*128}")
    for k in range(3):
        a(f"s_waitcnt lgkmcnt({5*(2-k)+5})")
        for t in range(5):
            for e in range(0, 4, 2):
                c = ACC + 16 * t + e
                a(f"v_pk_add_f32 {vr(c,2)}, {vr(c,2)}, {vr(R+4*(5*k+t)+e,2)}")
    a("s_waitcnt vmcnt(0) lgkmcnt(0)")
    T = R
    for t in range(5):
        for d in range(2):
            c = ACC + 16 * t + 2 * d
            xr = XR + 2 * t + d; ar = AO + 2 * t + d
            a(f"""
            v_lshlrev_b32 v{T}, 16, v{xr}
            v_and_b32 v{T+1}, 0xffff0000, v{xr}
            v_lshlrev_b32 v{T+2}, 16, v{ar}
            v_and_b32 v{T+3}, 0xffff0000, v{ar}
            v_pk_add_f32 {vr(T,2)}, {vr(T,2)}, {vr(T+2,2)}
            v_pk_add_f32 {vr(c,2)}, {vr(c,2)}, {vr(T,2)}
            v_cvt_pk_bf16_f32 v{xr}, v{c}, v{c+1}
            """)
            T = R + 4 * ((2 * t + d + 1) % 4)
        if t == 1: a(f"buffer_store_dwordx4 {vr(XR,4)}, v5, s[12:15], s72 offen")
        if t == 3: a(f"buffer_store_dwordx4 {vr(XR+4,4)}, v5, s[12:15], s72 offen offset:64")
        if t == 4: a(f"buffer_store_dwordx2 {vr(XR+8,2)}, v6, s[12:15], s72 offen offset:128")
    if stamps:
        a("s_waitcnt vmcnt(0)"); dump()
    a.label("L2end")
    lines, n = hazard.fix(a.l)
    a.l = lines
    return a.text()
```

```python
from asmlib import *
import k1 as K1
from k1 import atomic

def kgen_prog():
    h = A(); b = A()
    RAW = 32
    h(f"""
    s_lshr_b32 s70, s2, 1
    s_mul_i32 s70, s70, 5
    s_mul_i32 s71, s60, 3
    s_add_u32 s70, s70, s71
    s_add_u32 s70, s70, s3
    s_mul_i32 s71, s70, 384
    v_lshl_add_u32 v46, v0, 1, s71
    s_lshl_b32 s71, s70, 1
    v_mov_b32 v47, s71
    global_load_ushort v44, v47, s[42:43]
    global_load_ushort v45, v47, s[44:45]
    """)
    for u in range(3):
        for k, sp in enumerate((34, 36, 38, 40)):
            h(f"global_load_ushort v{RAW+4*u+k}, v46, s[{sp}:{sp+1}] offset:{128*u}")
    h(f"""
    s_mov_b32 s72, {K1.LOG2E}
    s_mov_b32 s73, {K1.LOG2E_LO}
    s_mov_b32 s74, {K1.LN2}
    s_mul_i32 s75, s3, {K1.KTS}
    s_add_u32 s75, s75, {K1.KT}
    v_lshl_add_u32 v48, v0, 2, s75
    v_and_b32 v49, 15, v0
    v_min_u32 v50, 8, v49
    v_mul_u32_u24 v49, {K1.KROW}, v49
    v_mul_u32_u24 v50, {K1.KROW}, v50
    v_lshrrev_b32 v51, 4, v0
    v_lshl_add_u32 v49, v51, 4, v49
    v_lshl_add_u32 v50, v51, 4, v50
    v_add_u32 v49, s75, v49
    v_add_u32 v50, s75, v50
    s_lshl_b32 s76, s70, 11
    s_add_u32 s76, s76, {WS_K}
    """)
    def expb(dst, src, t):
        b(f"""
        v_mul_f32 v{t}, s72, v{src}
        v_fma_f32 v{t+1}, v{src}, s72, -v{t}
        v_fma_f32 v{t+1}, v{src}, s73, v{t+1}
        v_exp_f32 v{t}, v{t}
        v_mul_f32 v{t+1}, s74, v{t+1}
        v_fma_f32 v{t}, v{t}, v{t+1}, v{t}
        v_cvt_pk_bf16_f32 v{t}, v{t}, v{t}
        v_lshlrev_b32 v{dst}, 16, v{t}
        """)
    b.l.append(("atleast", 1))
    b("s_waitcnt vmcnt(0)")
    for r in range(RAW, RAW + 14): b(f"v_lshlrev_b32 v{r}, 16, v{r}")
    expb(44, 44, 52)
    b(f"""
    v_max3_f32 v52, abs(v{RAW+2}), abs(v{RAW+3}), abs(v{RAW+6})
    v_max3_f32 v52, abs(v{RAW+7}), abs(v{RAW+10}), v52
    v_max_f32 v52, abs(v{RAW+11}), v52
    """)
    K1.rowsum16(b, 52, "max")
    b("""
    v_mov_b32 v53, v52
    v_permlane16_swap_b32 v52, v53
    v_max_f32 v52, v52, v53
    v_mov_b32 v53, v52
    v_permlane32_swap_b32 v52, v53
    v_max_f32 v52, v52, v53
    v_frexp_exp_i32_f32 v52, v52
    v_sub_u32 v53, 8, v52
    v_subrev_u32 v52, 7, v52
    v_ldexp_f32 v47, v44, v52
    """)
    for u in range(3):
        p = RAW + 4 * u
        expb(p, p, 54)
        b(f"""
        v_mul_f32 v{p}, v{p}, v44
        v_mul_f32 v{p+1}, v{p+1}, v44
        v_mul_f32 v{p}, 0xbfb8aa3b, v{p}
        v_mul_f32 v{p+1}, 0.15915494, v{p+1}
        v_ldexp_f32 v{p+2}, v{p+2}, v53
        v_ldexp_f32 v{p+3}, v{p+3}, v53
        """)
    ACC = 52
    E = {}
    nxt = [64]
    def new():
        r = nxt[0]; nxt[0] += 2; assert nxt[0] <= 168, nxt[0]; return r
    def cmul(z, x, y):
        b(f"""
        v_mul_f32 v{z}, v{x}, v{y}
        v_mul_f32 v{z+1}, v{x}, v{y+1}
        v_fma_f32 v{z}, -v{x+1}, v{y+1}, v{z}
        v_fma_f32 v{z+1}, v{x+1}, v{y}, v{z+1}
        """)
    def csq(z, x):
        b(f"""
        v_mul_f32 v{z}, v{x}, v{x}
        v_mul_f32 v{z+1}, v{x}, v{x+1}
        v_fma_f32 v{z}, -v{x+1}, v{x+1}, v{z}
        v_add_f32 v{z+1}, v{z+1}, v{z+1}
        """)
    for tau in (1, 2, 4, 8, 16, 32, 64, 128, 256, 512, 1024): E[tau] = new()
    Rk = {j: new() for j in (3, 5, 6, 7)}
    L = {t: new() for t in range(1, 8)}
    for t in (128, 130, 132, 134, 256, 260, 384, 388, 512, 640, 768, 896, 1024): L[t] = new()
    TMP = [new(), new()]
    PK = [new(), new()]
    FR = 64
    pk = [0]
    def put(row, z, neg):
        t = PK[0] + (pk[0] % 4); pk[0] += 1
        b(f"v_cvt_pk_f16_f32 v{t}, v{z}, {'-' if neg else ''}v{z+1}")
        b(f"ds_write_b32 v48, v{t} offset:{row*K1.KROW}")
    tmpi = [0]
    def tmp():
        tmpi[0] ^= 1; return TMP[tmpi[0]]
    for u in range(3):
        p = RAW + 4 * u
        er, rho, C = p, p + 1, p + 2
        L[0] = C
        for tau in (1, 16, 256):
            z = E[tau]; t = TMP[0]
            if tau == 1:
                b(f"v_exp_f32 v{t}, v{er}\nv_fract_f32 v{t+1}, v{rho}")
            else:
                b(f"""
                v_mul_f32 v{t}, {float(tau)}, v{er}
                v_mul_f32 v{t+1}, {float(tau)}, v{rho}
                v_exp_f32 v{t}, v{t}
                v_fract_f32 v{t+1}, v{t+1}
                """)
            b(f"""
            v_cos_f32 v{z}, v{t+1}
            v_sin_f32 v{z+1}, v{t+1}
            v_mul_f32 v{z}, v{z}, v{t}
            v_mul_f32 v{z+1}, v{z+1}, v{t}
            """)
        for s in (1, 16, 256, 2, 32, 512, 4, 64): csq(E[2*s], E[s])
        b(f"v_mov_b32 v{TMP[0]}, 0x3c00")
        b(f"ds_write_b32 v48, v{TMP[0]}")
        R = {1: E[8], 2: E[16], 4: E[32], 8: E[64]}
        for j in (1, 2, 4, 8): put(j, R[j], True)
        for j, (x, y) in ((3, (1, 2)), (5, (4, 1)), (6, (4, 2)), (7, (4, 3))):
            R[j] = Rk[j]; cmul(R[j], R[x], R[y]); put(j, R[j], True)
        for j in range(9, 16):
            z = tmp(); cmul(z, R[8], R[j-8]); put(j, z, True)
        put(16 + 0, L[0], False)
        for t, (x, y) in ((1, (0, 1)), (2, (0, 2)), (3, (1, 2)), (4, (0, 4)), (5, (1, 4)), (6, (2, 4)), (7, (3, 4))):
            cmul(L[t], L[x], E[y]); put(16 + t, L[t], False)
        for bb in range(8):
            z = L.get(128 + bb) or tmp(); cmul(z, L[bb], E[128]); put(16 + 8 + bb, z, False)
        for i in range(2):
            for bb in range(4):
                t = 128 * i + 2 * bb
                z = L.get(256 + t) or tmp(); cmul(z, L[t], E[256]); put(32 + 4 * i + bb, z, False)
        for i in range(4):
            for bb in range(2):
                t = 128 * i + 4 * bb
                z = L.get(512 + t) or tmp(); cmul(z, L[t], E[512]); put(32 + 8 + 2 * i + bb, z, False)
        for i in range(8):
            t = 128 * i
            z = L.get(1024 + t) or tmp(); cmul(z, L[t], E[1024]); put(48 + i, z, False)
        z = tmp(); cmul(z, L[1024], E[1024]); put(56, z, False)
        b("s_waitcnt lgkmcnt(0)")
        for s in range(4): b(f"ds_read_b128 {vr(FR+4*s,4)}, v49 offset:{64*s}")
        for tl in range(3):
            for s in range(4):
                b(f"ds_read_b128 {vr(FR+16+16*tl+4*s,4)}, v{50 if tl == 2 else 49} offset:{(16+16*tl)*K1.KROW + 64*s}")
        b("s_waitcnt lgkmcnt(0)")
        for s in range(4):
            for tl in range(3):
                c = "0" if (u == 0 and s == 0) else vr(ACC+4*tl, 4)
                b(f"v_mfma_f32_16x16x32_f16 {vr(ACC+4*tl,4)}, {vr(FR+16+16*tl+4*s,4)}, {vr(FR+4*s,4)}, {c}")
    b("v_cmp_eq_u32 vcc, 0, v0")
    b("v_cndmask_b32 v45, 0, v45, vcc")
    b("v_lshlrev_b32 v46, 4, v0")
    b("v_lshlrev_b32 v48, 3, v0")
    b(f"v_fma_f32 v{ACC}, v{ACC}, v47, v45")
    for r in range(1, 12): b(f"v_mul_f32 v{ACC+r}, v{ACC+r}, v47")
    for r in range(6): b(f"v_cvt_pk_bf16_f32 v{64+r}, v{ACC+2*r}, v{ACC+2*r+1}")
    b("buffer_store_dwordx4 v[64:67], v46, s[16:19], s76 offen")
    b("buffer_store_dwordx2 v[68:69], v48, s[16:19], s76 offen offset:1024")
    return h.l, b.l
```

```python
import sys
from asmlib import *
import k1, k2
HEAD = open("parallel_sum__ssm_conv_s4d__glu_gated_glu__prompt.s.ref").read().split("; Override launch geometry")[0]
def build(path, kw1={}, kw2={}):
    hdr = HEAD + f"; @launch kernel=k1_kernel grid=(256,1,1) block=(768,1,1) lds={k1.LDS1}\n; @launch kernel=k2_kernel grid=(256,1,1) block=(512,1,1) lds={k2.LDS2}\n.amdgcn_target \"amdgcn-amd-amdhsa--gfx950\"\n"
    open(path, "w").write(hdr + kern("k1_kernel", k1.gen(**kw1), 168, sgpr=102) + kern("k2_kernel", k2.gen(**kw2), 256, sgpr=102))
if __name__ == "__main__":
    build("../full.s", dict(fmode="atomic"), dict())
    build("../full_st.s", dict(fmode="atomic", stamps=True), dict(stamps=True))
```
